```python
import torch

def _softmax(x, axis=-1):
    return torch.softmax(x, dim=axis)
def _gelu(x):
    return torch.nn.functional.gelu(x, approximate="tanh")
def _silu(x):
    return torch.nn.functional.silu(x)
def _sigmoid(x):
    return torch.sigmoid(x)
def _layernorm(x, axis=-1, eps=1e-5):
    m = x.mean(dim=axis, keepdim=True)
    v = x.var(dim=axis, keepdim=True, unbiased=False)
    return (x - m) / torch.sqrt(v + eps)
def _scatter_add(tgt, idx, src, axis=0):
    return tgt.clone().index_add_(axis, idx, src)
def _segment_sum(src, seg, n):
    out = torch.zeros((n,) + src.shape[1:], dtype=src.dtype)
    return out.index_add_(0, seg, src)
def _pad(x, pw):
    flat = tuple(v for pair in reversed(pw) for v in pair)
    return torch.nn.functional.pad(x, flat)

kernel_name = 'sequential_preLN__linear_kernel_hedgehog__swiglu_ffn__prompt'

def setup_inputs():

    _w = (lambda a: (lambda t: t.to(torch.bfloat16) if t.is_floating_point() else t)(torch.as_tensor(a)))
    def _A_setup():
        B, S, D, H = 1, 2048, 448, 16
        Dh = D // H
        return {
            "x": _w((lambda *s: torch.randn(*s, dtype=torch.bfloat16) * 0.05)(B, S, D)),
            "wqkv": _w((lambda *s: torch.randn(*s, dtype=torch.bfloat16) * 0.2)(D, 3 * D)),
            "w_phi": _w((lambda *s: torch.randn(*s, dtype=torch.bfloat16) * 0.2)(H, Dh, Dh) * (Dh ** -0.5)),
            "wo": _w((lambda *s: torch.randn(*s, dtype=torch.bfloat16) * 0.05)(D, D)),
        }
    _A_in = _A_setup()

    def _B_setup():
        B, S, D, F = 1, 2048, 448, 1792
        return {
            "x": _w((lambda *s: torch.randn(*s, dtype=torch.bfloat16) * 0.05)(B, S, D)),
            "w_gate": _w((lambda *s: torch.randn(*s, dtype=torch.bfloat16) * 0.05)(D, F)),
            "w_up": _w((lambda *s: torch.randn(*s, dtype=torch.bfloat16) * 0.05)(D, F)),
            "w_down": _w((lambda *s: torch.randn(*s, dtype=torch.bfloat16) * 0.05)(F, D)),
        }
    _B_in = _B_setup()

    return {
        "A_x": _A_in["x"],
        "A_wqkv": _A_in["wqkv"],
        "A_w_phi": _A_in["w_phi"],
        "A_wo": _A_in["wo"],
        "B_x": _B_in["x"],
        "B_w_gate": _B_in["w_gate"],
        "B_w_up": _B_in["w_up"],
        "B_w_down": _B_in["w_down"],
    }

def reference(A_x, A_wqkv, A_w_phi, A_wo, B_x, B_w_gate, B_w_up, B_w_down):
    def _A_ref(x, wqkv, w_phi, wo):
        B, S, D = x.shape
        H = 16; Dh = D // H
        qkv = (lambda x, *d: x.permute(*d))((x @ wqkv).reshape(B, S, 3, H, Dh), 2, 0, 3, 1, 4)
        q, k, v = qkv[0], qkv[1], qkv[2]
        pq = torch.einsum("bhsd,hdf->bhsf", q, w_phi)
        pk = torch.einsum("bhsd,hdf->bhsf", k, w_phi)
        phi_q = torch.concatenate([_softmax(pq, axis=-1), _softmax(-pq, axis=-1)], axis=-1)
        phi_k = torch.concatenate([_softmax(pk, axis=-1), _softmax(-pk, axis=-1)], axis=-1)
        kv = torch.einsum("bhsf,bhsd->bhfd", phi_k, v)
        z  = torch.einsum("bhsf->bhf", phi_k)
        num = torch.einsum("bhqf,bhfd->bhqd", phi_q, kv)
        den = torch.einsum("bhqf,bhf->bhq", phi_q, z)[..., None] + 1e-6
        o = num / den
        return (lambda x, *d: x.permute(*d))(o, 0, 2, 1, 3).reshape(B, S, D) @ wo

    def _B_ref(x, w_gate, w_up, w_down):
        g = _silu(x @ w_gate)
        u = x @ w_up
        return (g * u) @ w_down

    x = A_x
    h = x + _A_ref(_layernorm(x, axis=-1), A_wqkv, A_w_phi, A_wo)
    h2 = h + _B_ref(_layernorm(h, axis=-1), B_w_gate, B_w_up, B_w_down)
    return h2
```

```python
NAME = 'sequential_preLN__linear_kernel_hedgehog__swiglu_ffn__prompt'
class A:
    def __init__(self):
        self.l = []
        self.nlab = 0
    def __call__(self, s):
        for x in s.split('\n'):
            x = x.strip()
            if x: self.l.append(('' if x.endswith(':') else '    ') + x)
    def lab(self, p='L'):
        self.nlab += 1
        return f'{p}_{self.nlab}'
    def text(self):
        return '\n'.join(self.l) + '\n'

def kernel_wrap(name, body, vgpr=256, sgpr=102, accum=256):
    t = f'''.text
.globl {name}
.p2align 8
.type {name},@function
{name}:
{body}
.section .rodata,"a"
.p2align 6
.amdhsa_kernel {name}
  .amdhsa_next_free_vgpr {vgpr}
  .amdhsa_next_free_sgpr {sgpr}
  .amdhsa_accum_offset {accum}
  .amdhsa_group_segment_fixed_size 0
  .amdhsa_kernarg_size 88
  .amdhsa_user_sgpr_count 2
  .amdhsa_user_sgpr_kernarg_segment_ptr 1
  .amdhsa_system_sgpr_workgroup_id_x 1
.end_amdhsa_kernel
'''
    return t

def file_wrap(launches, kernels):
    h = ''
    if len(launches) == 1 and launches[0][0] == NAME + '_kernel':
        n, g, b, l = launches[0]
        h += f'; @launch grid=({g},1,1) block=({b},1,1) lds={l}\n'
    else:
        for n, g, b, l in launches:
            h += f'; @launch kernel={n} grid=({g},1,1) block=({b},1,1) lds={l}\n'
    h += '.amdgcn_target "amdgcn-amd-amdhsa--gfx950"\n'
    return h + ''.join(kernels)
```

```python
import re

REG_RE = re.compile(r'\b([vas])(\d+)\b|\b([vas])\[(\d+):(\d+)\]|\b(vcc|exec|m0)\b')
TRANS = ('v_exp_f32', 'v_log_f32', 'v_rcp_f32', 'v_rsq_f32', 'v_sqrt_f32', 'v_sin_f32', 'v_cos_f32')


def regs_of(s):
    out = []
    for m in REG_RE.finditer(s):
        if m.group(1):
            out.append((m.group(1), int(m.group(2))))
        elif m.group(3):
            out += [(m.group(3), i) for i in range(int(m.group(4)), int(m.group(5)) + 1)]
        else:
            out.append((m.group(6), 0))
    return out


def split_ops(s):
    ops, depth, cur = [], 0, ''
    for ch in s:
        if ch == '[':
            depth += 1
        if ch == ']':
            depth -= 1
        if ch == ',' and depth == 0:
            ops.append(cur.strip())
            cur = ''
        else:
            cur += ch
    if cur.strip():
        ops.append(cur.strip())
    return ops


class Ins:
    __slots__ = ('text', 'op', 'kind', 'dst', 'src', 'cond', 'tk', 'passes', 'srcC', 'srcAB', 'wide_store', 'dpp', 'data')

    def __init__(self, text):
        self.text = text
        self.cond = 0
        self.tk = None
        self.passes = 0
        self.srcC = set()
        self.srcAB = set()
        self.wide_store = False
        self.data = set()
        self.dpp = False
        t = text.split(';')[0].strip()
        if t.endswith(':') or t.startswith('.'):
            self.op, self.kind, self.dst, self.src = t, 'label' if t.endswith(':') else 'dir', set(), set()
            return
        parts = t.split(None, 1)
        op = parts[0]
        rest = parts[1] if len(parts) > 1 else ''
        rest_nomod = re.sub(r'\b(op_sel|op_sel_hi|neg_lo|neg_hi|quad_perm):\[[^\]]*\]', '', rest)
        ops = split_ops(rest_nomod)
        self.op = op
        R = [set(regs_of(o)) for o in ops]
        allr = set().union(*R) if R else set()
        dst, src = set(), set()
        if op.startswith('v_mfma'):
            self.kind = 'mfma'
            dst = R[0]
            self.srcAB = R[1] | R[2]
            self.srcC = R[3]
            src = self.srcAB | self.srcC
            self.passes = 8 if '32x32x16' in op else 4 if '16x16x32' in op else None
            assert self.passes
        elif op.startswith('v_'):
            self.kind = 'valu'
            base = re.sub(r'_(e32|e64|dpp|sdwa)$', '', op)
            self.dpp = op.endswith('_dpp')
            if base in TRANS:
                self.kind = 'trans'
            if base.startswith('v_permlane'):
                dst = R[0] | R[1]
                src = R[0] | R[1]
            elif base in ('v_add_co_u32', 'v_sub_co_u32', 'v_addc_co_u32'):
                dst = R[0] | R[1]
                src = set().union(*R[2:])
            elif base == 'v_nop':
                pass
            else:
                dst = R[0]
                src = set().union(*R[1:]) if len(R) > 1 else set()
                if base.startswith(('v_fmac', 'v_dot2c', 'v_writelane')) or self.dpp:
                    src |= R[0]
            assert not base.startswith('v_cmpx')
        elif op.startswith(('buffer_', 'global_')):
            self.kind = 'vmem'
            if '_load' in op and not re.search(r'\blds\b', rest) and '_lds_' not in op:
                dst = R[0]
                src = set().union(*R[1:])
            else:
                src = allr
                if re.search(r'\blds\b', rest) or '_lds_' in op:
                    src = src | {('m0', 0)}
                elif 'store' in op:
                    self.data = R[0] if op.startswith('buffer_') else R[1]
                    self.wide_store = op.endswith(('x3', 'x4'))
        elif op.startswith('ds_'):
            self.kind = 'ds'
            if 'read' in op or 'permute' in op or 'swizzle' in op:
                dst = R[0]
                src = set().union(*R[1:])
            else:
                src = allr
        elif op.startswith('s_'):
            self.kind = 'salu'
            if op.startswith(('s_load', 's_memtime', 's_memrealtime')):
                self.kind = 'smem'
                dst = R[0]
                src = set().union(*R[1:]) if len(R) > 1 else set()
            elif op.startswith(('s_cmp', 's_waitcnt', 's_barrier', 's_nop', 's_cbranch', 's_branch', 's_sleep', 's_setprio', 's_endpgm', 's_bitcmp')):
                src = allr
            else:
                dst = R[0]
                src = set().union(*R[1:]) if len(R) > 1 else set()
                if 'saveexec' in op:
                    dst = dst | {('exec', 0)}
        elif op in ('WAITVM', 'WAITLG'):
            self.kind = 'pseudo'
        else:
            raise ValueError(text)
        self.dst, self.src = dst, src

    def states(self):
        if self.kind in ('label', 'dir'):
            return 0
        if self.op == 's_nop':
            return int(self.text.split()[1]) + 1
        return 1


class S:
    def __init__(self):
        self.l = []

    def __call__(self, text):
        last = None
        for x in text.split('\n'):
            x = x.strip()
            if x and not x.startswith(';'):
                last = Ins(x)
                self.l.append(last)
        return last

    def waitvm(self, tk):
        i = Ins('WAITVM')
        i.tk = tk
        self.l.append(i)

    def waitlg(self, tk):
        i = Ins('WAITLG')
        i.tk = tk
        self.l.append(i)

    def add(self, other):
        self.l += other.l if isinstance(other, S) else other

    def cond(self, other, cid):
        for i in other.l:
            i.cond = cid
        self.l += other.l


def cost(i):
    if i.kind == 'trans' or i.op.startswith('v_permlane'):
        return 2
    if i.kind in ('pseudo',):
        return 1
    if i.kind in ('label', 'dir'):
        return 0
    return 1


def weave(main, side, slots=6, start=0, flush=True):
    out = S()
    side_l = list(side.l)
    m = main.l
    idx = [k for k, i in enumerate(m) if i.kind == 'mfma']
    pos = 0
    nm = 0
    for k, i in enumerate(m):
        out.l.append(i)
        if i.kind == 'mfma':
            nxt = idx[nm + 1] if nm + 1 < len(idx) else len(m)
            own = sum(cost(j) for j in m[k + 1:nxt])
            nm += 1
            if nm > start:
                budget = slots - own
                while pos < len(side_l) and budget > 0:
                    c = cost(side_l[pos])
                    if side_l[pos].kind == 'mfma':
                        out.l.append(side_l[pos]); pos += 1
                        budget = slots - own
                        continue
                    if c > budget and budget < slots - own:
                        break
                    out.l.append(side_l[pos]); pos += 1
                    budget -= c
    rest = S()
    rest.l = side_l[pos:]
    if flush:
        out.l += rest.l
        return out
    return out, rest


def resolve_waits(l):
    out = []
    pos = {id(i): k for k, i in enumerate(l)}
    done = {'vmem': {}, 'ds': {}}
    for k, i in enumerate(l):
        if i.kind == 'pseudo':
            cls = 'vmem' if i.op == 'WAITVM' else 'ds'
            tk = i.tk
            assert tk.kind == cls, (tk.text, cls)
            p = pos[id(tk)]
            assert p < k, ('wait before op', tk.text)
            known = max(done[cls].get(0, -1), done[cls].get(i.cond, -1))
            if p <= known:
                continue
            assert tk.cond in (0, i.cond), 'ticket from other cond region'
            n = 0
            for j in l[p + 1:k]:
                if j.kind == cls and j.cond in (0, i.cond):
                    n += 1
            n = max(0, min(n, 63 if cls == 'vmem' else 15))
            done[cls][i.cond] = p
            w = Ins(f's_waitcnt {"vmcnt" if cls == "vmem" else "lgkmcnt"}({n})')
            w.cond = i.cond
            if out and out[-1].op == 's_waitcnt' and out[-1].cond == w.cond and \
                    (('vmcnt' in out[-1].text) != ('vmcnt' in w.text)) and len(out[-1].text.split()) == 2:
                mg = Ins(out[-1].text + ' ' + w.text.split()[1])
                mg.cond = w.cond
                out[-1] = mg
            else:
                out.append(w)
        else:
            if i.op == 's_waitcnt':
                if 'vmcnt(0)' in i.text:
                    done['vmem'][i.cond] = k
                if 'lgkmcnt(0)' in i.text:
                    done['ds'][i.cond] = k
            out.append(i)
    return out


def is_v(r):
    return r[0] in 'va' and r[0] != 'vcc'


def need(p, c):
    n = 0
    pv = p.kind in ('valu', 'trans')
    cv = c.kind in ('valu', 'trans')
    if pv:
        vd = {r for r in p.dst if r[0] in ('v', 'a')}
        sd = {r for r in p.dst if r[0] in ('s', 'vcc')}
        if c.kind == 'mfma' and vd & c.src:
            n = max(n, 2)
        if cv:
            if p.kind == 'trans' and vd & c.src:
                n = max(n, 1)
            if (c.op.startswith('v_permlane') or c.dpp) and vd & c.src:
                n = max(n, 2)
            if c.op.startswith(('v_readlane', 'v_readfirstlane')) and vd & c.src:
                n = max(n, 1)
            if sd & c.src:
                n = max(n, 4 if c.op.startswith(('v_readlane', 'v_writelane')) else 2)
            if p.op.startswith('v_dot2') and vd & (c.src | c.dst) and c.op != p.op:
                n = max(n, 3)
        if c.kind == 'vmem' and sd & c.src:
            n = max(n, 5)
        if c.kind == 'salu' and sd & c.src:
            n = max(n, 1)
    if p.kind == 'mfma':
        P = p.passes
        if c.kind == 'mfma':
            if p.dst & c.srcAB:
                n = max(n, P + 4)
            if p.dst & c.srcC and not (p.dst == c.srcC and p.passes == c.passes):
                n = max(n, P + 2)
            if p.dst & c.dst and p.dst != c.srcC:
                n = max(n, P + 2)
        elif c.kind in ('valu', 'trans', 'vmem', 'ds'):
            if p.dst & (c.src | c.dst):
                n = max(n, P + 4)
            if cv and p.srcC & c.dst:
                n = max(n, P - 1)
    if p.kind == 'salu' and ('m0', 0) in p.dst and c.kind == 'vmem' and ('m0', 0) in c.src:
        n = max(n, 1)
    if p.kind == 'vmem' and p.wide_store and p.data & c.dst:
        n = max(n, 2)
    if p.kind == 'ds' and not p.dst and cv and (p.src & c.dst) and p.op.endswith(('b128', 'b96')):
        n = max(n, 1)
    return n


def hazards(l):
    out = []
    nops = 0
    for c in l:
        if c.kind in ('label', 'dir'):
            out.append(c)
            continue
        req = 0
        st = {}
        for p in reversed(out):
            base = st.get(0, 0) + (st.get(c.cond, 0) if c.cond else 0)
            if base >= 20:
                break
            dist = base + (st.get(p.cond, 0) if p.cond not in (0, c.cond) else 0)
            if dist < 20:
                r = need(p, c) - dist
                if r > req:
                    req = r
            st[p.cond] = st.get(p.cond, 0) + p.states()
        if req > 0:
            w = Ins(f's_nop {req - 1}')
            w.cond = c.cond
            out.append(w)
            nops += req
        out.append(c)
    return out, nops


def finalize(s):
    l = resolve_waits(s.l)
    l, nops = hazards(l)
    txt = []
    for i in l:
        txt.append(i.text if i.kind == 'label' else '    ' + i.text)
    return '\n'.join(txt) + '\n', nops
```

```python
import sys
from core import *
import ag

MF = 'v_mfma_f32_32x32x16_bf16'
MF16 = 'v_mfma_f32_16x16x32_bf16'
F1, F2, F3, F4, F5 = 0x1000, 0x2000, 0x3000, 0x4000, 0x5000
KV, STAT, PART, O, H, ACT, TS = 0x10000, 0x20000, 0x100000, 0x500000, 0x700000, 0x900000, 0x1000000
X_, WQKV_, WPHI_, WO_, WGU_, WD_, OUT_, WS_ = ('s[28:31]', 's[32:35]', 's[36:39]', 's[40:43]', 's[44:47]', 's[52:55]', 's[56:59]', 's[60:63]')
sW, sTAG, sG, sHEAD, sSLOT, sXCD = 's3', 's64', 's65', 's66', 's67', 's68'
sC, sMASKHI, sCNT = 's69', 's70', 's71'
sHM = 's[72:73]'
sL28 = 's[74:75]'
sA, sB, sD, sE, sF = 's76', 's77', 's78', 's79', 's80'
sK1, sK2 = 's81', 's82'
sRB, sCT = 's83', 's27'
HUGE = 0x7ff00000
LIMIT = 400000


def vr(b, n=4):
    return f'v[{b}:{b + n - 1}]' if n > 1 else f'v{b}'


def ar(b, n=4):
    return f'a[{b}:{b + n - 1}]' if n > 1 else f'a{b}'


class Gen:
    def __init__(self, stamps=False):
        self.s = S()
        self.stamps = stamps
        self.nst = 0
        self.stn = []
        self.nl = 0

    def lab(self, p):
        self.nl += 1
        return f'{p}_{self.nl}'

    def stamp(self, name, s=None):
        if not self.stamps:
            return
        regs = list(range(4, 26, 2)) + list(range(84, 102, 2))
        r = regs[self.nst]
        self.nst += 1
        self.stn.append((name, r))
        (s or self.s)(f's_memrealtime s[{r}:{r + 1}]')

    def poll(self, s, voff, soff, vt):
        L, D = self.lab('Lp'), self.lab('Ld')
        s(f'''s_mov_b32 {sCNT}, {LIMIT}
        {L}:
        buffer_load_dword {vt}, {voff}, {WS_}, {soff} offen sc1
        s_sub_u32 {sCNT}, {sCNT}, 1
        s_cbranch_scc1 {D}
        s_waitcnt vmcnt(0)
        v_cmp_ne_u32 vcc, {sTAG}, {vt}
        s_cbranch_vccnz {L}
        {D}:''')

    def flag(self, s, tk, soff):
        s.waitvm(tk)
        return s(f'buffer_store_dword v15, v14, {WS_}, {soff} offen sc1')

    def softmax(self, P, EP, EN, FP, FN, T):
        s = S()
        for r in range(12, 16):
            s(f'v_cndmask_b32_e64 v{P + r}, v{P + r}, v{P}, {sHM}')
        M, N, t1, t2, a0, a1, b0, b1 = range(T, T + 8)
        s(f'v_max3_f32 v{M}, v{P}, v{P + 1}, v{P + 2}\nv_min3_f32 v{N}, v{P}, v{P + 1}, v{P + 2}')
        for r in range(3, 15, 2):
            s(f'v_max3_f32 v{M}, v{M}, v{P + r}, v{P + r + 1}\nv_min3_f32 v{N}, v{N}, v{P + r}, v{P + r + 1}')
        s(f'''v_max_f32 v{M}, v{M}, v{P + 15}
        v_min_f32 v{N}, v{N}, v{P + 15}
        v_mov_b32 v{t1}, v{M}
        v_mov_b32 v{t2}, v{N}
        v_permlane32_swap_b32 v{M}, v{t1}
        v_permlane32_swap_b32 v{N}, v{t2}
        v_max_f32 v{M}, v{M}, v{t1}
        v_min_f32 v{N}, v{N}, v{t2}
        v_mul_f32_e64 v{M}, -v{M}, {sC}
        v_mul_f32 v{N}, {sC}, v{N}''')
        for r in range(16):
            s(f'v_fma_f32 v{EP + r}, v{P + r}, {sC}, v{M}\nv_fma_f32 v{EN + r}, -v{P + r}, {sC}, v{N}')
            s(f'v_exp_f32 v{EP + r}, v{EP + r}\nv_exp_f32 v{EN + r}, v{EN + r}')
            q = r - 1
            if q == 1 or q == 13:
                d0, d1 = (a0, a1) if q == 1 else (b0, b1)
                s(f'v_add_f32 v{d0}, v{EP + q - 1}, v{EP + q}\nv_add_f32 v{d1}, v{EN + q - 1}, v{EN + q}')
            elif q > 1 and q != 12:
                d0, d1 = (a0, a1) if q < 12 else (b0, b1)
                s(f'v_add_f32 v{d0}, v{d0}, v{EP + q}\nv_add_f32 v{d1}, v{d1}, v{EN + q}')
        s(f'''v_add_f32 v{b0}, v{b0}, v{EP + 15}
        v_add_f32 v{b1}, v{b1}, v{EN + 15}
        v_fmac_f32 v{a0}, v13, v{b0}
        v_fmac_f32 v{a1}, v13, v{b1}
        v_mov_b32 v{t1}, v{a0}
        v_mov_b32 v{t2}, v{a1}
        v_permlane32_swap_b32 v{a0}, v{t1}
        v_permlane32_swap_b32 v{a1}, v{t2}
        v_add_f32 v{a0}, v{a0}, v{t1}
        v_add_f32 v{a1}, v{a1}, v{t2}
        v_rcp_f32 v{a0}, v{a0}
        v_rcp_f32 v{a1}, v{a1}
        v_mul_f32 v{b0}, v13, v{a0}
        v_mul_f32 v{b1}, v13, v{a1}''')
        for E, F, lo, hi in ((EP, FP, a0, b0), (EN, FN, a1, b1)):
            for r in range(0, 16, 2):
                k = lo if r < 12 else hi
                s(f'v_mul_f32 v{E + r}, v{k}, v{E + r}\nv_mul_f32 v{E + r + 1}, v{k}, v{E + r + 1}')
                s(f'v_cvt_pk_bf16_f32 v{F + r // 2}, v{E + r}, v{E + r + 1}')
        return s

    def pack(self, s, dst, src, n):
        for i in range(n):
            s(f'v_cvt_pk_bf16_f32 v{dst + i}, v{src + 2 * i}, v{src + 2 * i + 1}')

    def gemm1(self, acc, base, off0, transposed, XF, RING, NR, xn_reads=None):
        s = S()
        tk = {}
        xk = {}

        def rd(k):
            r = RING + 4 * (k % NR)
            if xn_reads:
                xk[k] = s(xn_reads(k))
            s(f'ds_read_b64_tr_b16 {vr(r, 2)}, {base} offset:{off0 + k * 2048}')
            tk[k] = s(f'ds_read_b64_tr_b16 {vr(r + 2, 2)}, {base} offset:{off0 + k * 2048 + 512}')
        D = NR - 1
        for k in range(D):
            rd(k)
        for k in range(28):
            s.waitlg(tk[k])
            a, b = vr(RING + 4 * (k % NR)), vr(XF + 4 * k)
            if not transposed:
                a, b = b, a
            s(f'{MF} {vr(acc, 16)}, {a}, {b}, {vr(acc, 16) if k else 0}')
            if k + D < 28:
                rd(k + D)
        return s

    def build(self):
        s = self.s
        WK, WV, XN = 0, 57344, 102400
        XF, XR = 16, 128
        s(f'''s_cmp_ge_u32 s2, 256
        s_cbranch_scc1 L_end
        s_load_dwordx16 s[4:19], s[0:1], 0
        s_load_dwordx2 s[20:21], s[0:1], 64
        s_load_dwordx2 s[24:25], s[0:1], 80
        v_lshrrev_b32 v1, 6, v0
        v_and_b32 v0, 63, v0
        v_readfirstlane_b32 {sW}, v1
        s_and_b32 {sXCD}, s2, 7
        s_lshr_b32 {sSLOT}, s2, 3
        s_and_b32 {sA}, {sXCD}, 1
        s_lshl_b32 {sA}, {sA}, 2
        s_and_b32 {sD}, {sSLOT}, 3
        s_add_u32 {sA}, {sA}, {sD}
        s_lshr_b32 {sB}, {sXCD}, 1
        s_lshl_b32 {sB}, {sB}, 3
        s_lshr_b32 {sD}, {sSLOT}, 2
        s_add_u32 {sB}, {sB}, {sD}
        s_lshl_b32 {sG}, {sB}, 1
        s_lshr_b32 {sD}, {sW}, 1
        s_add_u32 {sG}, {sG}, {sD}
        s_lshl_b32 {sHEAD}, {sA}, 1
        s_and_b32 {sD}, {sW}, 1
        s_add_u32 {sHEAD}, {sHEAD}, {sD}
        s_lshl_b32 {sE}, {sB}, 2
        s_add_u32 {sE}, {sE}, {sW}
        s_mul_i32 {sE}, {sE}, {16 * 896}
        s_mul_i32 {sF}, {sA}, 112
        s_mul_i32 {sD}, {sW}, {8 * 2688}
        s_add_u32 {sF}, {sF}, {sD}
        v_lshrrev_b32 v1, 3, v0
        v_and_b32 v2, 7, v0
        v_bfe_u32 v3, v0, 4, 1
        v_lshlrev_b32 v3, 2, v3
        v_xor_b32 v3, v3, v2
        v_lshlrev_b32 v3, 4, v3
        v_mul_u32_u24 v4, 896, v1
        v_add_u32 v6, v4, v3
        v_lshl_add_u32 v4, v2, 4, v4
        v_mul_u32_u24 v5, 2688, v1
        v_add_u32 v5, v5, v3
        s_mov_b32 s30, 1835008
        s_mov_b32 s31, 0x20000
        s_mov_b32 s34, 1204224
        s_mov_b32 s35, 0x20000
        s_mov_b32 s62, 0x10000000
        s_mov_b32 s63, 0x20000
        s_waitcnt lgkmcnt(0)
        s_mov_b32 s28, s4
        s_mov_b32 s29, s5
        s_mov_b32 s32, s6
        s_mov_b32 s33, s7
        s_mov_b32 s60, s24
        s_mov_b32 s61, s25''')
        tk_ep = s(f'buffer_load_dword v15, off, {WS_}, 0 sc1')
        tx = []
        s(f's_add_u32 {sD}, {sE}, 7168')
        for i in range(7):
            for rs in range(2):
                tx.append(s(f'buffer_load_dwordx4 {vr(XR + 28 * rs + 4 * i)}, v4, {X_}, {sD if rs else sE} offen offset:{128 * i}'))
        s(f's_mov_b32 {sK1}, 4096\ns_mov_b32 {sK2}, {32 * 2688}')

        def wdma(mat, lds, n0, n1):
            t = None
            s(f's_lshl_b32 {sD}, {sW}, 10\ns_add_u32 m0, {sD}, {lds + n0 * 4096}\ns_add_u32 {sD}, {sF}, {mat * 896 + n0 * 32 * 2688}')
            for n in range(n0, n1):
                t = s(f'buffer_load_dwordx4 v5, {WQKV_}, {sD} offen lds')
                if n + 1 < n1:
                    s(f's_add_u32 m0, m0, {sK1}\ns_add_u32 {sD}, {sD}, {sK2}')
            return t
        tk_wk = wdma(1, WK, 0, 14)
        s(f'''s_mov_b32 s36, s8
        s_mov_b32 s37, s9
        s_mov_b32 s38, 25088
        s_mov_b32 s39, 0x20000
        s_mov_b32 s40, s10
        s_mov_b32 s41, s11
        s_mov_b32 s42, 401408
        s_mov_b32 s43, 0x20000
        s_cmp_lt_u32 {sW}, 2
        s_cselect_b32 s44, s14, s16
        s_cselect_b32 s45, s15, s17
        s_mov_b32 s46, 1605632
        s_mov_b32 s47, 0x20000
        s_mov_b32 s52, s18
        s_mov_b32 s53, s19
        s_mov_b32 s54, 1605632
        s_mov_b32 s55, 0x20000
        s_mov_b32 s56, s20
        s_mov_b32 s57, s21
        s_mov_b32 s58, 1835008
        s_mov_b32 s59, 0x20000
        s_mov_b32 {sC}, 0x3fb8aa3b
        s_mov_b32 {sMASKHI}, 0xffff0000
        s_mov_b32 s72, 0
        s_mov_b32 s73, -1
        s_mov_b32 s74, 0x10000000
        s_mov_b32 s75, 0x10000000''')
        self.stamp('start')
        RING = 192
        s(f'''v_lshrrev_b32 v7, 5, v0
        v_and_b32 v8, 31, v0
        v_mul_u32_u24 v9, 224, v7
        v_lshl_add_u32 v9, v8, 1, v9
        v_mov_b32 v10, {HUGE}
        v_cmp_gt_u32 vcc, 28, v8
        v_cndmask_b32 v9, v10, v9, vcc
        v_cndmask_b32_e64 v11, v9, v10, {sHM}
        v_cmp_eq_u32 vcc, 0, v0
        v_cndmask_b32_e64 v14, v10, 0, vcc
        v_cndmask_b32_e64 v13, 1.0, 0, {sHM}
        s_mul_i32 {sD}, {sHEAD}, 1568''')
        for q in range(16):
            st, e = q // 8, q % 8
            tk_phi = s(f'buffer_load_ushort v{RING + q}, {"v11" if q >= 12 else "v9"}, {WPHI_}, {sD} offen offset:{(16 * st + 8 * (e >> 2) + (e & 3)) * 56}')
        tk_wv = wdma(2, WV, 0, 11)
        s(f'v_lshlrev_b32 v9, 2, v7\nv_sub_u32 v9, v8, v9\nv_mov_b32 v11, 0x3f80\nv_mov_b32 v12, 0x3f800000')
        for q in range(8):
            b = 16 * (q // 4) + 8 * ((q >> 1) & 1) + 2 * (q & 1)
            s(f'''v_cmp_eq_u32 vcc, {b}, v9
            v_cmp_eq_u32_e64 s[48:49], {b + 1}, v9
            v_cndmask_b32 v{240 + q}, 0, v11, vcc
            v_cndmask_b32_e64 v{240 + q}, v{240 + q}, v12, s[48:49]''')
        s(f'''v_bfe_u32 v248, v0, 2, 2
        v_bfe_u32 v249, v0, 4, 1
        v_and_b32 v250, 3, v0
        v_lshlrev_b32 v250, 3, v250
        v_lshl_add_u32 v250, v249, 5, v250
        v_bfe_u32 v251, v0, 3, 1
        v_lshlrev_b32 v251, 6, v251
        s_and_b32 {sD}, {sW}, 1
        s_mul_i32 {sD}, {sD}, 56
        v_add_u32 v10, {sD}, v250
        v_xor_b32 v10, v10, v251
        v_lshl_add_u32 v252, v7, 3, v248
        v_lshl_add_u32 v10, v252, 7, v10
        v_add_u32 v11, {WV}, v10
        v_xor_b32 v3, v250, v251
        v_lshl_add_u32 v252, v7, 2, v248
        v_lshl_add_u32 v3, v252, 7, v3
        s_lshr_b32 {sD}, {sW}, 1
        s_mul_i32 {sD}, {sD}, 29568
        s_add_u32 {sD}, {sD}, {XN}
        v_mul_u32_u24 v9, 528, v7
        v_lshl_add_u32 v9, v8, 4, v9
        v_add_u32 v9, {sD}, v9
        s_and_b32 {sE}, {sW}, 1
        s_lshl_b32 {sE}, {sE}, 8
        s_add_u32 {sD}, {sD}, {sE}
        v_mul_u32_u24 v12, 528, v2
        v_lshl_add_u32 v12, v1, 4, v12
        v_add_u32 v12, {sD}, v12
        v_lshlrev_b32 v2, 4, v0''')
        s.waitvm(tk_ep)
        s(f'''v_readfirstlane_b32 {sTAG}, v15
        s_mul_i32 {sTAG}, {sTAG}, 747796405
        s_add_u32 {sTAG}, {sTAG}, 0xac564b05
        v_mov_b32 v15, {sTAG}''')
        SUM = [248, 250]
        SQ = [252, 254]
        for i in range(7):
            for rs in range(2):
                s.waitvm(tx[2 * i + rs])
                for q in range(4):
                    r = XR + 28 * rs + 4 * i + q
                    f = XF + 56 * rs + 8 * i + 2 * q
                    s(f'v_lshlrev_b32 v{f}, 16, v{r}\nv_and_b32 v{f + 1}, {sMASKHI}, v{r}')
                    if i == 0 and q == 0:
                        s(f'v_pk_mul_f32 {vr(SQ[rs], 2)}, {vr(f, 2)}, {vr(f, 2)}')
                    else:
                        s(f'v_pk_fma_f32 {vr(SQ[rs], 2)}, {vr(f, 2)}, {vr(f, 2)}, {vr(SQ[rs], 2)}')
                    if i == 0 and q == 1:
                        s(f'v_pk_add_f32 {vr(SUM[rs], 2)}, {vr(f - 2, 2)}, {vr(f, 2)}')
                    elif not (i == 0 and q == 0):
                        s(f'v_pk_add_f32 {vr(SUM[rs], 2)}, {vr(SUM[rs], 2)}, {vr(f, 2)}')
        self.stamp('x_in')
        four = [248, 250, 252, 254]
        for r in four:
            s(f'v_add_f32 v{r}, v{r}, v{r + 1}')
        for m in ('quad_perm:[1,0,3,2]', 'quad_perm:[2,3,0,1]', 'row_half_mirror'):
            for r in four:
                s(f'v_add_f32_dpp v{r}, v{r}, v{r} {m} row_mask:0xf bank_mask:0xf')
        inv = 0x3b124925
        for rs in range(2):
            a, b = SUM[rs], SQ[rs]
            s(f'''v_mul_f32 v{a}, {inv}, v{a}
            v_mul_f32 v{b}, {inv}, v{b}
            v_fma_f32 v{b}, -v{a}, v{a}, v{b}
            v_max_f32 v{b}, 0, v{b}
            v_add_f32 v{b}, 0x3727c5ac, v{b}
            v_rsq_f32 v{b}, v{b}
            v_mul_f32_e64 v{b + 1}, -v{a}, v{b}''')
        for i in range(7):
            for rs in range(2):
                for q in range(4):
                    r = XR + 28 * rs + 4 * i + q
                    f = XF + 56 * rs + 8 * i + 2 * q
                    s(f'v_pk_fma_f32 {vr(f, 2)}, {vr(f, 2)}, {vr(SQ[rs], 2)}, {vr(SQ[rs], 2)} op_sel:[0,0,1] op_sel_hi:[1,0,1]')
                    s(f'v_cvt_pk_bf16_f32 v{r}, v{f}, v{f + 1}')
                tw = s(f'ds_write_b128 v12, {vr(XR + 28 * rs + 4 * i)} offset:{i * 4224 + rs * 128}')
        s.waitvm(tk_phi)
        for q in range(8):
            s(f'v_lshl_or_b32 v{232 + q}, v{RING + 2 * q + 1}, 16, v{RING + 2 * q}')
        s.waitlg(tw)
        s('s_barrier')
        self.stamp('B1')
        ACK, P, EP, EN, ACV = 128, 144, 160, 176, 216
        s.add(self.gemm1(ACK, 'v10', 0, True, XF, RING, 5, xn_reads=lambda k: f'ds_read_b128 {vr(XF + 4 * k)}, v9 offset:{k * 1056}'))
        s('s_barrier')
        tk_wv = wdma(2, WV, 11, 14)
        tk_wq = wdma(0, WK, 0, 14)
        self.stamp('kgemm')
        side = S()
        self.pack(side, EP, ACK, 8)
        side(f'{MF} {vr(P, 16)}, {vr(232)}, {vr(EP)}, 0\n{MF} {vr(P, 16)}, {vr(236)}, {vr(EP + 4)}, {vr(P, 16)}')
        s.add(side)
        s.waitvm(tk_wv)
        s('s_barrier')
        self.stamp('B2')
        s.add(weave(self.gemm1(ACV, 'v11', 0, False, XF, RING, 5), self.softmax(P, EP, EN, 128, 136, 248), slots=8))
        TP, TN, AP, AN, VB = 144, 160, 176, 184, 192
        s(f'''{MF} {vr(TP, 16)}, {vr(128)}, {vr(240)}, 0
        {MF} {vr(TN, 16)}, {vr(136)}, {vr(240)}, 0
        {MF} {vr(TP, 16)}, {vr(132)}, {vr(244)}, {vr(TP, 16)}
        {MF} {vr(TN, 16)}, {vr(140)}, {vr(244)}, {vr(TN, 16)}
        v_mov_b32 v248, 0x3f803f80''')
        self.pack(s, VB, ACV, 8)
        for q in range(8):
            s(f'v_cndmask_b32_e64 v{VB + q}, v{VB + q}, v248, {sL28}')
        self.pack(s, AP, TP, 8)
        self.pack(s, AN, TN, 8)
        s(f'''{MF} {vr(TP, 16)}, {vr(AP)}, {vr(VB)}, 0
        {MF} {vr(TN, 16)}, {vr(AN)}, {vr(VB)}, 0
        {MF} {vr(TP, 16)}, {vr(AP + 4)}, {vr(VB + 4)}, {vr(TP, 16)}
        {MF} {vr(TN, 16)}, {vr(AN + 4)}, {vr(VB + 4)}, {vr(TN, 16)}
        s_lshl_b32 {sD}, {sHEAD}, 6
        s_add_u32 {sD}, {sD}, {sG}
        s_lshl_b32 {sE}, {sD}, 2
        s_add_u32 {sE}, {sE}, {F1}
        s_lshl_b32 {sD}, {sD}, 12
        s_add_u32 {sD}, {sD}, {PART}''')
        for q in range(4):
            self.pack(s, 128 + 4 * q, TP + 8 * q, 4)
            t = s(f'buffer_store_dwordx4 {vr(128 + 4 * q)}, v2, {WS_}, {sD} offen offset:{1024 * q} sc1')
        self.stamp('part_st')
        self.flag(s, t, sE)
        s('s_barrier')
        self.stamp('B3')
        s.add(self.gemm1(ACV, 'v10', 0, True, XF, RING, 5))
        self.pack(s, EP, ACV, 8)
        s(f'{MF} {vr(P, 16)}, {vr(232)}, {vr(EP)}, 0\n{MF} {vr(P, 16)}, {vr(236)}, {vr(EP + 4)}, {vr(P, 16)}')
        s.add(self.softmax(P, EP, EN, 128, 136, 248))
        self.stamp('phiq')
        r = S()
        r(f'''v_and_b32 v9, 15, v0
        v_mov_b32 v11, 0x3f80
        v_mov_b32 v12, 0x3f800000''')
        for q in range(4):
            r(f'''v_cmp_eq_u32 vcc, {2 * q}, v9
            v_cmp_eq_u32_e64 s[48:49], {2 * q + 1}, v9
            v_cndmask_b32 v{248 + q}, 0, v11, vcc
            v_cndmask_b32_e64 v{248 + q}, v{248 + q}, v12, s[48:49]''')
        r(f'''v_lshrrev_b32 v10, 4, v0
        v_lshlrev_b32 v11, 4, v9
        v_lshl_add_u32 v12, v10, 3, v11
        v_lshl_add_u32 v11, v10, 12, v11
        v_mov_b32 v10, {HUGE}
        v_cndmask_b32_e64 v12, v12, v10, {sHM}
        v_lshlrev_b32 v9, 2, v0
        s_lshr_b32 {sA}, s2, 4
        s_and_b32 {sB}, s2, 15
        s_lshl_b32 {sD}, {sA}, 8
        s_add_u32 {sD}, {sD}, {F1}''')
        self.poll(r, 'v9', sD, 'v10')
        r(f'''s_lshl_b32 {sD}, {sA}, 18
        s_lshl_b32 {sE}, {sB}, 8
        s_add_u32 {sD}, {sD}, {sE}
        s_add_u32 {sD}, {sD}, {PART}''')
        tl = []
        for i in range(16):
            tl.append(r(f'buffer_load_dwordx4 {vr(184 + 4 * i)}, v11, {WS_}, {sD} offen sc1'))
            r(f's_add_u32 {sD}, {sD}, 16384')
        for i in range(16):
            r.waitvm(tl[i])
            r(f'{MF16} {vr(252)}, {vr(248)}, {vr(184 + 4 * i)}, {vr(252) if i else 0}')
        r(f'''s_lshl_b32 {sD}, s2, 8
        s_add_u32 {sD}, {sD}, {KV}
        s_lshl_b32 {sE}, {sA}, 7
        s_lshl_b32 {sB}, {sB}, 2
        s_add_u32 {sE}, {sE}, {sB}
        s_add_u32 {sE}, {sE}, {F2}''')
        self.pack(r, 252, 252, 2)
        t = r(f'buffer_store_dwordx2 {vr(252, 2)}, v12, {WS_}, {sD} offen sc1')
        self.flag(r, t, sE)
        s(f's_cmp_lg_u32 {sW}, 0\ns_cbranch_scc1 L_noR')
        s.cond(r, 1)
        s('L_noR:')
        self.stamp('R')
        s(f'''v_and_b32 v9, 15, v0
        v_lshlrev_b32 v9, 2, v9
        s_lshl_b32 {sD}, {sHEAD}, 7
        s_add_u32 {sD}, {sD}, {F2}''')
        self.poll(s, 'v9', sD, 'v10')
        self.stamp('kv_ok')
        s(f's_lshl_b32 {sD}, {sHEAD}, 12\ns_add_u32 {sD}, {sD}, {KV}')
        tl = [s(f'buffer_load_dwordx4 {vr(144 + 4 * q)}, v2, {WS_}, {sD} offen offset:{1024 * q} sc1') for q in range(4)]
        s(f'''s_lshl_b32 {sD}, {sG}, 4
        s_add_u32 {sD}, {sD}, {sHEAD}
        s_lshl_b32 {sE}, {sD}, 2
        s_add_u32 {sE}, {sE}, {F3}
        s_lshl_b32 {sD}, {sD}, 11
        s_add_u32 {sD}, {sD}, {O}''')
        for q in range(4):
            s.waitvm(tl[q])
            s(f'{MF} {vr(160, 16)}, {vr(144 + 4 * q)}, {vr(128 + 4 * q)}, {vr(160, 16) if q else 0}')
        s(f'''v_add_f32 v248, 0x358637bd, v172
        v_mov_b32 v249, v248
        v_permlane32_swap_b32 v248, v249
        v_rcp_f32 v249, v249
        v_mul_f32 v248, v13, v249''')
        for q in range(16):
            s(f'v_mul_f32 v{160 + q}, v{249 if q < 12 else 248}, v{160 + q}')
        for q in range(2):
            self.pack(s, 176 + 4 * q, 160 + 8 * q, 4)
            t = s(f'buffer_store_dwordx4 {vr(176 + 4 * q)}, v2, {WS_}, {sD} offen offset:{1024 * q} sc1')
        self.flag(s, t, sE)
        self.stamp('o_pub')
        s(f's_cmp_ge_u32 {sSLOT}, 28\ns_cbranch_scc1 L_fin')
        s(f'''s_mul_i32 {sA}, {sSLOT}, 37
        s_lshr_b32 {sA}, {sA}, 8
        s_mul_i32 {sB}, {sA}, 7
        s_sub_u32 {sCT}, {sSLOT}, {sB}
        s_lshl_b32 {sRB}, {sXCD}, 2
        s_add_u32 {sRB}, {sRB}, {sA}
        s_barrier''')
        s(f'''s_mul_i32 {sD}, {sW}, {112 * 896}
        s_lshl_b32 {sE}, {sCT}, 7
        s_add_u32 {sD}, {sD}, {sE}
        s_mul_i32 {sE}, {sW}, 14336
        s_mov_b32 m0, {sE}
        s_movk_i32 {sK1}, 1024
        s_movk_i32 {sK2}, 7168''')
        for n in range(14):
            t_wo = s(f'buffer_load_dwordx4 v6, {WO_}, {sD} offen lds')
            if n < 13:
                s(f's_add_u32 m0, m0, {sK1}\ns_add_u32 {sD}, {sD}, {sK2}')
        s(f'''s_lshl_b32 {sG}, {sRB}, 1
        s_lshr_b32 {sA}, {sW}, 1
        s_add_u32 {sG}, {sG}, {sA}
        s_mul_i32 {sD}, {sG}, {32 * 896}
        s_lshl_b32 {sB}, {sCT}, 1
        s_and_b32 {sF}, {sW}, 1
        s_add_u32 {sB}, {sB}, {sF}
        s_lshl_b32 {sA}, {sB}, 6
        s_add_u32 {sD}, {sD}, {sA}
        v_mul_u32_u24 v9, 896, v8
        v_lshl_add_u32 v9, v7, 3, v9''')
        for g in range(4):
            t_xr = s(f'buffer_load_dwordx2 {vr(80 + 2 * g, 2)}, v9, {X_}, {sD} offen offset:{16 * g}')
        s(f'''s_lshl_b32 {sA}, {sF}, 6
        v_xor_b32 v9, {sA}, v3
        v_add_u32 v9, {sE}, v9
        v_xor_b32 v10, 64, v9
        v_lshlrev_b32 v12, 9, v7
        v_sub_u32 v11, v9, v12
        v_sub_u32 v12, v10, v12''')
        s.waitvm(t_wo)
        WOF = 16
        for i in range(4):
            for st in range(2):
                for ct in range(2):
                    for j in range(2):
                        base = (11 if (st and j) else 9) + ct
                        t_wr = s(f'ds_read_b64_tr_b16 {vr(WOF + ((i * 2 + st) * 2 + ct) * 4 + 2 * j, 2)}, v{base} offset:{(28 * i + 16 * st + 8 * j) * 128}')
        s(f'''v_bfe_u32 v9, v0, 2, 1
        v_and_b32 v10, 3, v0
        v_lshlrev_b32 v10, 2, v10
        v_lshl_add_u32 v9, v9, 6, v10
        s_lshl_b32 {sD}, {sRB}, 7
        s_lshl_b32 {sE}, {sW}, 4
        s_add_u32 {sD}, {sD}, {sE}
        s_add_u32 {sD}, {sD}, {F3}''')
        self.poll(s, 'v9', sD, 'v10')
        self.stamp('o_ok')
        s(f'''s_lshl_b32 {sD}, {sG}, 15
        s_lshl_b32 {sE}, {sW}, 13
        s_add_u32 {sD}, {sD}, {sE}
        s_add_u32 {sD}, {sD}, {O}
        s_xor_b32 {sE}, {sD}, 0x8000
        s_add_u32 {sK1}, {sD}, 4096
        s_add_u32 {sK2}, {sE}, 4096''')
        OF, AC = 128, 192
        to = {}
        for k in range(8):
            for rg in range(2):
                so = [[sD, sK1], [sE, sK2]][rg][k // 4]
                to[k, rg] = s(f'buffer_load_dwordx4 {vr(OF + (k * 2 + rg) * 4)}, v2, {WS_}, {so} offen offset:{(k % 4) * 1024} sc1')
        s.waitlg(t_wr)
        s('s_barrier')
        for k in range(8):
            for rg in range(2):
                s.waitvm(to[k, rg])
                for ct in range(2):
                    a = AC + (rg * 2 + ct) * 16
                    s(f'{MF} {vr(a, 16)}, {vr(WOF + (k * 2 + ct) * 4)}, {vr(OF + (k * 2 + rg) * 4)}, {vr(a, 16) if k else 0}')
        for i in range(1, 4):
            s(f's_xor_b32 {sD}, {sW}, {i}\ns_lshl_b32 {sD}, {sD}, 14\nv_add_u32 v{8 + i}, {sD}, v2')
        s(f's_lshl_b32 {sD}, {sW}, 14\nv_add_u32 v12, {sD}, v2')
        for i in range(1, 4):
            for q in range(4):
                tw = s(f'ds_write_b128 v{8 + i}, {vr(AC + 16 * i + 4 * q)} offset:{i * 4096 + q * 1024}')
        s.waitvm(t_xr)
        for g in range(8):
            s(f'v_lshlrev_b32 v88, 16, v{80 + g}\nv_and_b32 v89, {sMASKHI}, v{80 + g}')
            s(f'v_pk_add_f32 {vr(AC + 2 * g, 2)}, {vr(AC + 2 * g, 2)}, v[88:89]')
        s.waitlg(tw)
        s('s_barrier')
        tr = {}
        for i in range(1, 4):
            for q in range(4):
                tr[i, q] = s(f'ds_read_b128 {vr(128 + 16 * (i - 1) + 4 * q)}, v12 offset:{i * 4096 + q * 1024}')
        for i in range(1, 4):
            for q in range(4):
                s.waitlg(tr[i, q])
                for u in range(2):
                    s(f'v_pk_add_f32 {vr(AC + 4 * q + 2 * u, 2)}, {vr(AC + 4 * q + 2 * u, 2)}, {vr(128 + 16 * (i - 1) + 4 * q + 2 * u, 2)}')
        s(f'''s_mul_i32 {sD}, {sG}, 28672
        s_lshl_b32 {sE}, {sB}, 11
        s_add_u32 {sD}, {sD}, {sE}
        s_add_u32 {sD}, {sD}, {H}''')
        for q in range(2):
            self.pack(s, 128 + 4 * q, AC + 8 * q, 4)
            s(f'buffer_store_dwordx4 {vr(128 + 4 * q)}, v2, {WS_}, {sD} offen offset:{1024 * q} sc1')
        s(f'v_pk_add_f32 v[88:89], {vr(AC, 2)}, {vr(AC + 2, 2)}\nv_pk_mul_f32 v[90:91], {vr(AC, 2)}, {vr(AC, 2)}')
        for u in range(1, 8):
            if u > 1:
                s(f'v_pk_add_f32 v[88:89], v[88:89], {vr(AC + 2 * u, 2)}')
            s(f'v_pk_fma_f32 v[90:91], {vr(AC + 2 * u, 2)}, {vr(AC + 2 * u, 2)}, v[90:91]')
        s(f'''v_add_f32 v88, v88, v89
        v_add_f32 v89, v90, v91
        v_lshlrev_b32 v9, 3, v0
        s_lshl_b32 {sD}, {sG}, 4
        s_add_u32 {sD}, {sD}, {sB}
        s_lshl_b32 {sE}, {sD}, 2
        s_add_u32 {sE}, {sE}, {F4}
        s_lshl_b32 {sD}, {sD}, 9
        s_add_u32 {sD}, {sD}, {STAT}''')
        t = s(f'buffer_store_dwordx2 v[88:89], v9, {WS_}, {sD} offen sc1')
        self.flag(s, t, sE)
        self.stamp('h_pub')
        s(f'''s_and_b32 {sA}, {sRB}, 3
        s_lshr_b32 {sRB}, {sXCD}, 1
        s_lshl_b32 {sRB}, {sRB}, 2
        s_add_u32 {sRB}, {sRB}, {sA}
        s_and_b32 {sA}, {sXCD}, 1
        s_mul_i32 {sA}, {sA}, 7
        s_add_u32 {sA}, {sA}, {sCT}''')
        s(f'''v_and_b32 v4, 0x70, v6
        s_lshr_b32 {sD}, {sW}, 1
        s_lshl_b32 {sE}, {sD}, 5
        v_xor_b32 v4, {sE}, v4
        v_mul_u32_u24 v5, 3584, v1
        v_add_u32 v4, v4, v5
        s_mul_i32 {sE}, {sD}, 28672
        s_lshl_b32 {sD}, {sF}, 6
        v_xor_b32 v10, {sD}, v3
        v_bfe_u32 v5, v0, 4, 1
        v_mul_u32_u24 v5, 57344, v5
        v_add3_u32 v10, v10, v5, {sE}
        v_xor_b32 v11, 32, v10
        s_lshl_b32 {sD}, {sA}, 8
        s_lshl_b32 {sE}, {sF}, 7
        s_add_u32 {sD}, {sD}, {sE}
        s_movk_i32 {sK1}, 1024
        s_movk_i32 {sK2}, {8 * 3584}''')
        for half in range(2):
            s('s_barrier')
            s(f's_mul_i32 {sE}, {sW}, 28672\ns_mov_b32 m0, {sE}')
            for n in range(28):
                t = s(f'buffer_load_dwordx4 v4, {WGU_}, {sD} offen lds')
                s(f's_add_u32 m0, m0, {sK1}\ns_add_u32 {sD}, {sD}, {sK2}')
            s.waitvm(t)
            s('s_barrier')
            for k in range(14):
                for T in range(2):
                    for j in range(2):
                        t = s(f'ds_read_b64_tr_b16 {ar((T * 28 + half * 14 + k) * 4 + 2 * j, 2)}, v{10 + T} offset:{(16 * k + 8 * j) * 128}')
            s.waitlg(t)
        CS = 192
        for q in range(4):
            s(f'v_mov_b32 v{88 + q}, 0x3f803f80')
        for k in range(28):
            for T in range(2):
                s(f'{MF} {vr(CS + 16 * T, 16)}, {ar((T * 28 + k) * 4)}, v[88:91], {vr(CS + 16 * T, 16) if k else 0}')
        self.stamp('wgu')
        s(f'''v_and_b32 v9, 15, v0
        v_min_u32 v9, 13, v9
        v_lshlrev_b32 v9, 2, v9
        v_lshrrev_b32 v10, 4, v0
        v_lshl_add_u32 v9, v10, 6, v9
        s_lshl_b32 {sD}, {sRB}, 8
        s_add_u32 {sD}, {sD}, {F4}
        s_barrier''')
        self.poll(s, 'v9', sD, 'v10')
        self.stamp('h_ok')
        HB, STB = 0, 114688
        s(f'''s_mul_i32 {sE}, {sW}, 7168
        s_mul_i32 {sD}, {sRB}, 114688
        s_add_u32 {sD}, {sD}, {sE}
        s_add_u32 {sD}, {sD}, {H}''')
        th = []

        def hdma(rg):
            for hf in range(2):
                s(f's_add_u32 m0, {sE}, {HB + rg * 28672 + hf * 4096}\ns_add_u32 {sK1}, {sD}, {rg * 28672 + hf * 4096}')
                for n in range(4 - hf):
                    t = s(f'buffer_load_dwordx4 v2, {WS_}, {sK1} offen offset:{n * 1024} sc1 lds')
            th.append(t)
        hdma(0)
        s(f'''s_lshl_b32 {sK2}, {sRB}, 2
        s_add_u32 {sK2}, {sK2}, {sW}
        s_lshl_b32 {sK2}, {sK2}, 13
        s_add_u32 {sK2}, {sK2}, {STAT}
        s_add_u32 {sB}, {sK2}, 4096
        v_lshlrev_b32 v9, 3, v0''')
        for c in range(14):
            ts = s(f'buffer_load_dwordx2 {vr(88 + 2 * c, 2)}, v9, {WS_}, {sK2 if c < 8 else sB} offen offset:{(c % 8) * 512} sc1')
        for rg in range(1, 4):
            hdma(rg)
        s.waitvm(ts)
        for c in range(1, 14):
            s(f'v_pk_add_f32 v[88:89], v[88:89], {vr(88 + 2 * c, 2)}')
        s(f'''v_mov_b32 v90, v88
        v_mov_b32 v91, v89
        v_permlane32_swap_b32 v88, v90
        v_permlane32_swap_b32 v89, v91
        v_add_f32 v88, v88, v90
        v_add_f32 v89, v89, v91
        v_mul_f32 v88, {inv | 0x80000000}, v88
        v_mul_f32 v89, {inv}, v89
        v_fma_f32 v90, -v88, v88, v89
        v_max_f32 v90, 0, v90
        v_add_f32 v90, 0x3727c5ac, v90
        v_rsq_f32 v89, v90
        v_mul_f32_e64 v89, v89, -{sC}
        v_lshlrev_b32 v9, 4, v8
        v_add_u32 v9, {STB}, v9
        s_lshl_b32 {sB}, {sW}, 9
        v_add_u32 v10, {sB}, v9
        v_add_u32 v11, 57344, v2''')
        tw = s('ds_write_b128 v10, v[88:91]')
        s.waitlg(tw)
        s(f'''s_lshl_b32 {sA}, {sA}, 2
        s_add_u32 {sA}, {sA}, {sW}
        s_mul_i32 {sD}, {sRB}, {4 * 114688}
        s_lshl_b32 {sB}, {sA}, 11
        s_add_u32 {sD}, {sD}, {sB}
        s_add_u32 {sD}, {sD}, {ACT}
        s_lshl_b32 {sE}, {sRB}, 10
        s_lshl_b32 {sB}, {sA}, 2
        s_add_u32 {sE}, {sE}, {sB}
        s_add_u32 {sE}, {sE}, {F5}''')
        HR, NH = 224, 6

        def p3main(rg):
            m = S()
            acc = 128 + 32 * (rg % 2)
            tk = {}

            def rd(k):
                tk[k] = m(f'ds_read_b128 {vr(HR + 4 * (k % NH))}, {"v2" if rg < 2 else "v11"} offset:{(rg % 2) * 28672 + k * 1024}')
            for k in range(NH - 1):
                rd(k)
            for k in range(28):
                m.waitlg(tk[k])
                for T in range(2):
                    m(f'{MF} {vr(acc + 16 * T, 16)}, {ar((T * 28 + k) * 4)}, {vr(HR + 4 * (k % NH))}, {vr(acc + 16 * T, 16) if k else 0}')
                if k + NH - 1 < 28:
                    rd(k + NH - 1)
            return m

        def p3epi(rg):
            e = S()
            acc = 128 + 32 * (rg % 2)
            t = e(f'ds_read_b128 v[248:251], v9 offset:{rg * 512}')
            e.waitlg(t)
            for T in range(2):
                for r0 in range(0, 8, 4):
                    rr = range(r0, r0 + 4)
                    g = lambda r: acc + 16 * T + r
                    u = lambda r: acc + 16 * T + 8 + r
                    tmp = lambda r: 88 + (r % 4)
                    for r in rr:
                        e(f'v_fmac_f32 v{g(r)}, v248, v{CS + 16 * T + r}')
                    for r in rr:
                        e(f'v_mul_f32 v{tmp(r)}, v249, v{g(r)}')
                    for r in rr:
                        e(f'v_exp_f32 v{tmp(r)}, v{tmp(r)}\nv_fmac_f32 v{u(r)}, v248, v{CS + 16 * T + 8 + r}')
                    for r in rr:
                        e(f'v_fma_f32 v{tmp(r)}, v{tmp(r)}, v250, v250')
                    for r in rr:
                        e(f'v_rcp_f32 v{tmp(r)}, v{tmp(r)}\nv_mul_f32 v{g(r)}, v{g(r)}, v{u(r)}')
                    for r in rr:
                        e(f'v_mul_f32 v{g(r)}, v{g(r)}, v{tmp(r)}')
                    for r in rr[::2]:
                        e(f'v_cvt_pk_bf16_f32 v{92 + 4 * T + r // 2}, v{g(r)}, v{g(r + 1)}')
                t = e(f'buffer_store_dwordx4 {vr(92 + 4 * T)}, v2, {WS_}, {sD} offen offset:{T * 1024} sc1')
            e(f's_add_u32 {sD}, {sD}, 114688')
            return e, t
        pend = None
        for rg in range(4):
            s.waitvm(th[rg])
            s('s_barrier')
            if pend is None:
                s.add(p3main(rg))
            else:
                s.add(weave(p3main(rg), pend[0], slots=6, start=2))
                self.flag(s, pend[1], sE)
                s(f's_add_u32 {sE}, {sE}, 256')
            pend = p3epi(rg)
        s.add(pend[0])
        self.flag(s, pend[1], sE)
        self.stamp('act_pub')
        s(f'''s_and_b32 {sA}, {sRB}, 3
        s_lshr_b32 {sB}, {sA}, 1
        s_and_b32 {sA}, {sA}, 1
        s_lshl_b32 {sG}, {sXCD}, 1
        s_add_u32 {sG}, {sG}, {sB}
        s_lshl_b32 {sG}, {sG}, 2
        s_add_u32 {sG}, {sG}, {sA}
        s_mul_i32 {sD}, {sW}, {448 * 896}
        s_lshl_b32 {sE}, {sCT}, 7
        s_add_u32 {sD}, {sD}, {sE}
        s_mul_i32 {sE}, {sW}, 28672
        s_lshl_b32 {sA}, {sW}, 5
        v_xor_b32 v10, {sA}, v3
        v_add_u32 v10, {sE}, v10
        v_xor_b32 v11, 64, v10
        s_movk_i32 {sK1}, 1024
        s_movk_i32 {sK2}, 7168
        s_barrier''')
        for half in range(2):
            s(f's_mov_b32 m0, {sE}')
            for n in range(28):
                t = s(f'buffer_load_dwordx4 v6, {WD_}, {sD} offen lds')
                s(f's_add_u32 m0, m0, {sK1}\ns_add_u32 {sD}, {sD}, {sK2}')
            s.waitvm(t)
            for k in range(14):
                for ct in range(2):
                    for j in range(2):
                        t = s(f'ds_read_b64_tr_b16 {ar(((half * 14 + k) * 2 + ct) * 4 + 2 * j, 2)}, v{10 + ct} offset:{(16 * k + 8 * j) * 128}')
            s.waitlg(t)
        self.stamp('wd')
        RED = 114688
        for i in range(1, 4):
            s(f's_xor_b32 {sD}, {sW}, {i}\ns_mul_i32 {sD}, {sD}, 6144\ns_add_u32 {sD}, {sD}, {RED}\nv_add_u32 v{8 + i}, {sD}, v2')
        s(f'''s_mul_i32 {sD}, {sW}, 6144
        s_add_u32 {sD}, {sD}, {RED}
        v_add_u32 v12, {sD}, v2
        v_min_u32 v4, 13, v0
        v_lshlrev_b32 v4, 2, v4
        v_mul_u32_u24 v5, 896, v8
        v_lshl_add_u32 v5, v7, 4, v5''')
        for ps in range(2):
            s(f'''s_lshl_b32 {sD}, {sG}, 8
            s_mul_i32 {sE}, {sW}, 56
            s_add_u32 {sD}, {sD}, {sE}
            s_add_u32 {sD}, {sD}, {F5}''')
            self.poll(s, 'v4', sD, 'v1')
            s(f'''s_mul_i32 {sD}, {sG}, 114688
            s_mul_i32 {sE}, {sW}, 28672
            s_add_u32 {sD}, {sD}, {sE}
            s_add_u32 {sD}, {sD}, {ACT}''')
            ta = []
            for k in range(28):
                ta.append(s(f'buffer_load_dwordx4 {vr(16 + 4 * k)}, v2, {WS_}, {sD} offen offset:{(k % 4) * 1024} sc1'))
                if k % 4 == 3:
                    s(f's_add_u32 {sD}, {sD}, 4096')
            s(f'''s_mul_i32 {sD}, {sG}, 28672
            s_lshl_b32 {sE}, {sCT}, 2
            s_add_u32 {sE}, {sE}, {sW}
            s_lshl_b32 {sA}, {sE}, 10
            s_add_u32 {sD}, {sD}, {sA}
            s_add_u32 {sD}, {sD}, {H}''')
            t_h = s(f'buffer_load_dwordx4 v[160:163], v2, {WS_}, {sD} offen sc1')
            for k in range(28):
                s.waitvm(ta[k])
                for ct in range(2):
                    s(f'{MF} {vr(128 + 16 * ct, 16)}, {ar((k * 2 + ct) * 4)}, {vr(16 + 4 * k)}, {vr(128 + 16 * ct, 16) if k else 0}')
            for i in range(1, 4):
                for q in range(2):
                    tw = s(f'ds_write_b128 v{8 + i}, {vr(128 + 8 * i + 4 * q)} offset:{ps * 24576 + (i - 1) * 2048 + q * 1024}')
            s.waitvm(t_h)
            for g in range(4):
                s(f'v_lshlrev_b32 v164, 16, v{160 + g}\nv_and_b32 v165, {sMASKHI}, v{160 + g}')
                s(f'v_pk_add_f32 {vr(128 + 2 * g, 2)}, {vr(128 + 2 * g, 2)}, v[164:165]')
            s.waitlg(tw)
            s('s_barrier')
            tr = [s(f'ds_read_b128 {vr(168 + 4 * q)}, v12 offset:{ps * 24576 + q * 1024}') for q in range(6)]
            for q in range(6):
                s.waitlg(tr[q])
                for u in range(2):
                    d = 128 + 4 * (q % 2) + 2 * u
                    s(f'v_pk_add_f32 {vr(d, 2)}, {vr(d, 2)}, {vr(168 + 4 * q + 2 * u, 2)}')
            self.pack(s, 160, 128, 4)
            s(f'''v_permlane32_swap_b32 v160, v162
            v_permlane32_swap_b32 v161, v163
            s_mul_i32 {sD}, {sG}, {32 * 896}
            s_lshl_b32 {sE}, {sE}, 5
            s_add_u32 {sD}, {sD}, {sE}
            buffer_store_dwordx4 v[160:163], v5, {OUT_}, {sD} offen
            s_add_u32 {sG}, {sG}, 2''')
        s(f'''s_or_b32 {sD}, s2, {sW}
        s_cmp_lg_u32 {sD}, 0
        s_cbranch_scc1 L_fin
        buffer_store_dword v15, v14, {WS_}, 0 offen sc1
        L_fin:''')
        if self.stamps:
            self.stamp('end')
            s('s_waitcnt lgkmcnt(0)\nv_mov_b32 v16, 0')
            for i, (n, r) in enumerate(self.stn):
                s(f'v_writelane_b32 v16, s{r}, {i}')
            s(f'''s_lshl_b32 {sD}, s2, 2
            s_add_u32 {sD}, {sD}, {sW}
            s_lshl_b32 {sD}, {sD}, 8
            s_add_u32 {sD}, {sD}, {TS}
            v_lshlrev_b32 v17, 2, v0
            buffer_store_dword v16, v17, {WS_}, {sD} offen''')
        s('L_end:\ns_endpgm')
        txt, nops = finalize(s)
        return txt, nops


def make(stamps=False):
    g = Gen(stamps)
    txt, nops = g.build()
    k = ag.kernel_wrap(ag.NAME + '_kernel', txt, vgpr=512, accum=256)
    return ag.file_wrap([(ag.NAME + '_kernel', 256, 256, 163840)], [k]), g.stn, nops


if __name__ == '__main__':
    t, stn, nops = make(False)
    open('gen/k1.s', 'w').write(t)
    t, stn, nops = make(True)
    open('gen/k1_ts.s', 'w').write(t)
    open('gen/k1_ts.names', 'w').write(' '.join(n for n, r in stn))
    print('nops', nops, 'lines', t.count('\n'))
```

```python
import k1, ag
from core import *
hdr = open('header.txt').read()
base, _, _ = k1.make(False)
def variant(pre='', post=''):
    t = base
    t = t.replace('    s_cbranch_scc1 L_end\n', '    s_cbranch_scc1 L_end\n' + pre, 1)
    t = t.replace('L_fin:\n', 'L_fin:\n' + post, 1)
    return hdr + t
open('gen/c_spin80.s','w').write(variant('    s_memrealtime s[90:91]\n', '''    s_waitcnt lgkmcnt(0)
    s_add_u32 s90, s90, 8000
L_spin:
    s_memrealtime s[92:93]
    s_waitcnt lgkmcnt(0)
    s_sub_u32 s94, s92, s90
    s_cmp_lt_i32 s94, 0
    s_cbranch_scc1 L_spin
'''))
def chain(koff, size, n, stride, start):
    t = f'''    s_cmp_lg_u32 s2, 0
    s_cbranch_scc1 L_noch
    s_load_dwordx2 s[84:85], s[0:1], {koff}
    s_waitcnt lgkmcnt(0)
    s_mov_b32 s86, {size}
    s_mov_b32 s87, 0x20000
    s_mov_b32 s88, {start}
    s_mov_b32 s89, {n}
L_ch:
    buffer_load_dword v20, off, s[84:87], s88
    s_add_u32 s88, s88, {stride}
    s_sub_u32 s89, s89, 1
    s_waitcnt vmcnt(0)
    s_cmp_lg_u32 s89, 0
    s_cbranch_scc1 L_ch
L_noch:
'''
    return t
open('gen/c_bx100.s','w').write(variant(chain(32, 1835008, 100, 16512, 0)))
open('gen/c_ws100.s','w').write(variant(chain(80, 0x10000000, 100, 16512, 0x2000000)))
open('gen/c_wsend100.s','w').write(variant(chain(80, 0x10000000, 100, 16512, 0xf800000)))
open('gen/c_clk.s','w').write(variant('', '''    s_memtime s[90:91]
    s_waitcnt lgkmcnt(0)
    s_add_u32 s90, s90, 100000
L_spin:
    s_memtime s[92:93]
    s_waitcnt lgkmcnt(0)
    s_sub_u32 s94, s92, s90
    s_cmp_lt_i32 s94, 0
    s_cbranch_scc1 L_spin
'''))
open('gen/c_base.s','w').write(variant())
```
